```python
import torch

def _softmax(x, axis=-1):
    return torch.softmax(x, dim=axis)
def _gelu(x):
    return torch.nn.functional.gelu(x, approximate="tanh")
def _silu(x):
    return torch.nn.functional.silu(x)
def _sigmoid(x):
    return torch.sigmoid(x)
def _layernorm(x, axis=-1, eps=1e-5):
    m = x.mean(dim=axis, keepdim=True)
    v = x.var(dim=axis, keepdim=True, unbiased=False)
    return (x - m) / torch.sqrt(v + eps)
def _scatter_add(tgt, idx, src, axis=0):
    return tgt.clone().index_add_(axis, idx, src)
def _segment_sum(src, seg, n):
    out = torch.zeros((n,) + src.shape[1:], dtype=src.dtype)
    return out.index_add_(0, seg, src)
def _pad(x, pw):
    flat = tuple(v for pair in reversed(pw) for v in pair)
    return torch.nn.functional.pad(x, flat)

kernel_name = 'concat_heads__mha_block_cached__gqa_block_cached__near_ridge'

def setup_inputs():

    _w = (lambda a: (lambda t: t.to(torch.bfloat16) if t.is_floating_point() else t)(torch.as_tensor(a)))
    def _A_setup():
        B, Sq, D = 16, 144, 640
        H, Sk, Dh = 32, 512, 192
        return {
            "x": _w((lambda *s: torch.randn(*s, dtype=torch.bfloat16) * 0.8)(B, Sq, D)),
            "k_cache": _w((lambda *s: torch.randn(*s, dtype=torch.bfloat16) * 0.8)(B, H, Sk, Dh)),
            "v_cache": _w((lambda *s: torch.randn(*s, dtype=torch.bfloat16) * 0.05)(B, H, Sk, Dh)),
            "wq": _w((lambda *s: torch.randn(*s, dtype=torch.bfloat16) * 0.8)(D, H * Dh) * (D ** -0.5)),
            "wo": _w((lambda *s: torch.randn(*s, dtype=torch.bfloat16) * 0.05)(H * Dh, D) * ((H * Dh) ** -0.5)),
        }
    _A_in = _A_setup()

    def _B_setup():
        B, Sq, D = 16, 144, 640
        Hq, Hkv, Sk, Dh = 32, 32, 512, 192
        assert Hq % Hkv == 0, (Hq, Hkv)
        return {
            "x": _w((lambda *s: torch.randn(*s, dtype=torch.bfloat16) * 0.8)(B, Sq, D)),
            "k_cache": _w((lambda *s: torch.randn(*s, dtype=torch.bfloat16) * 0.8)(B, Hkv, Sk, Dh)),
            "v_cache": _w((lambda *s: torch.randn(*s, dtype=torch.bfloat16) * 0.05)(B, Hkv, Sk, Dh)),
            "wq": _w((lambda *s: torch.randn(*s, dtype=torch.bfloat16) * 0.8)(D, Hq * Dh) * (D ** -0.5)),
            "wo": _w((lambda *s: torch.randn(*s, dtype=torch.bfloat16) * 0.05)(Hq * Dh, D) * ((Hq * Dh) ** -0.5)),
        }
    _B_in = _B_setup()

    return {
        "A_x": _A_in["x"],
        "A_k_cache": _A_in["k_cache"],
        "A_v_cache": _A_in["v_cache"],
        "A_wq": _A_in["wq"],
        "A_wo": _A_in["wo"],
        "B_x": _B_in["x"],
        "B_k_cache": _B_in["k_cache"],
        "B_v_cache": _B_in["v_cache"],
        "B_wq": _B_in["wq"],
        "B_wo": _B_in["wo"],
    }

def reference(A_x, A_k_cache, A_v_cache, A_wq, A_wo, B_x, B_k_cache, B_v_cache, B_wq, B_wo):
    def _A_ref(x, k_cache, v_cache, wq, wo):
        B, Sq, D = x.shape
        H, Dh = 32, 192
        q = (lambda x, *d: x.permute(*d))((x @ wq).reshape(B, Sq, H, Dh), 0, 2, 1, 3)
        scores = torch.einsum("bhqd,bhkd->bhqk", q, k_cache) * (Dh ** -0.5)
        p = _softmax(scores, axis=-1)
        o = torch.einsum("bhqk,bhkd->bhqd", p, v_cache)
        return (lambda x, *d: x.permute(*d))(o, 0, 2, 1, 3).reshape(B, Sq, H * Dh) @ wo

    def _B_ref(x, k_cache, v_cache, wq, wo):
        B, Sq, D = x.shape
        Hq, Dh = 32, 192
        Hkv = k_cache.shape[1]
        rep = Hq // Hkv
        q = (lambda x, *d: x.permute(*d))((x @ wq).reshape(B, Sq, Hq, Dh), 0, 2, 1, 3)
        k = (lambda x, n, axis: torch.repeat_interleave(x, n, dim=axis))(k_cache, rep, axis=1)
        v = (lambda x, n, axis: torch.repeat_interleave(x, n, dim=axis))(v_cache, rep, axis=1)
        scores = torch.einsum("bhqd,bhkd->bhqk", q, k) * (Dh ** -0.5)
        p = _softmax(scores, axis=-1)
        o = torch.einsum("bhqk,bhkd->bhqd", p, v)
        return (lambda x, *d: x.permute(*d))(o, 0, 2, 1, 3).reshape(B, Sq, Hq * Dh) @ wo

    a = _A_ref(A_x, A_k_cache, A_v_cache, A_wq, A_wo)
    b = _B_ref(B_x, B_k_cache, B_v_cache, B_wq, B_wo)
    return torch.concatenate([a, b], axis=-1)
```

```python
from sched import *
import math, struct

def f32(x):
    return "0x%08x" % struct.unpack('<I', struct.pack('<f', x))[0]

CSCALE = math.log2(math.e) / math.sqrt(192.0)
SLOT = 12288
WQ_RING = 36864
XS_BASE = 86016
SPARE = 73728
sX, sWQ, sK, sV, sO = S(4, 4), S(8, 4), S(12, 4), S(16, 4), S(20, 4)
sWv, sUnit, sPar = S(24), S(25), S(26)
sXs, sWs, sKs, sVs = S(28), S(29), S(30), S(31)
sX0, sX1, sX2, sVoff = S(32), S(33), S(34), S(35)
sdK, sdV, sT, sT2 = S(36), S(37), S(38), S(39)
sXb, sWb = S(40), S(41)
sC, sCnt, sOs, sO9 = S(42), S(43), S(44), S(45)
sT3, sEx, sThr = S(46), S(47), S(48)
vKV = V(216); vkb = [V(217), V(218)]; vvb = [V(219 + i) for i in range(4)]
vXo, vWo = V(223), V(224); vxb = [V(225), V(226)]; vwb = [V(227), V(228)]
vL16 = V(229)
vl = [V(230 + t) for t in range(5)]
vmf = [V(235 + t) for t in range(5)]
RING = [A(240, 4), A(244, 4), A(248, 4), A(252, 4), V(240, 4), V(244, 4), V(248, 4), V(252, 4)]
def Qf(t, ks): return V((t * 6 + ks) * 4, 4)
def Sx(kt, t): return V(120 + kt * 20 + t * 4, 4)
def Pf(j, t): return V(192, 4) if t == 4 else V(160 + (j % 2) * 16 + t * 4, 4)
def NM(t): return V(196 + t * 4, 4)
def Oa(t, T): return A((t * 12 + T) * 4, 4)
def Xf(s, e, t): return A((s % 2) * 40 + (e * 5 + t) * 4, 4)
def QA(p, t, T):
    u, half = T >> 1, T & 1
    if t < 4: return V(((t * 6 + u) * 2 + half) * 4, 4)
    return V(192 + ((u - 3 * p) * 2 + half) * 4, 4)

class Gen:
    def __init__(self, p):
        self.p = p
        self.rg = Region()
        self.fr = 0
        self.nbar = 0
    def nextbuf(self):
        b = RING[self.fr % len(RING)]; self.fr += 1; return b
    def salu(self, text, rd=(), wr=(), **kw): return self.rg.op(text, 'salu', rd, wr, **kw)
    def valu(self, text, rd=(), wr=(), **kw): return self.rg.op(text, 'valu', rd, wr, **kw)
    def dma(self, voff, srd, soff, imm, grp, nt, rd=(), **kw):
        n = self.cnt = getattr(self, 'cnt', 0) + 1
        tok = f"ld{n}"
        self.pieces.setdefault(grp, []).append(tok)
        return self.rg.op(f"buffer_load_dwordx4 {voff}, {srd}, {soff} offen" + (f" offset:{imm}" if imm else "") + (" nt" if nt else "") + " lds",
                          'dma', rd=[voff, srd, soff, M0] + list(rd), wr=[tok], grp=grp, **kw)
    pieces = None
    def waitv(self, grps, pin=None, wr=()):
        rd = []
        for g in grps: rd += self.pieces[g]
        return self.rg.op("", 'wait', rd=rd + ['seq'], wr=list(wr) + ['seq'], waitgrp=list(grps), pin=pin)
    def barrier(self, pin=None, wr=(), rd=()):
        self.nbar += 1
        return self.rg.op("s_barrier", 'bar', rd=['seq'] + list(rd), wr=['seq'] + list(wr), pin=pin)
    def mark(self, name, pin):
        return self.rg.op("", 'mark', pin=pin, note=name)

    def dma_x(self, s, rd=(), dep=None, **kw):
        p = self.p
        for i in range(10):
            row0 = 64 * p + 8 * i if i < 8 else 128 + 8 * (i - 8)
            self.salu(f"s_add_u32 {sT}, {sXs}, {row0*1280}", [sXs], [sT])
            self.salu(f"s_add_u32 m0, {sXb}, {i*1024}", [sXb], [M0])
            extra = list(rd)
            if dep is not None: extra += dep(i >> 1)
            self.dma(vXo, sX, sT, 0, f"x{s}", False, rd=extra, **kw)
        self.salu(f"s_add_u32 {sXs}, {sXs}, 128", [sXs], [sXs])
    def dma_wq(self, k, rd=(), **kw):
        for seg in range(3):
            self.salu(f"s_add_u32 m0, {sWb}, {WQ_RING + (k % 4) * SLOT + seg * 896}", [sWb], [M0])
            self.dma(vWo, sWQ, sWs, seg * 128, f"wq{k}", False, rd=rd, **kw)
        self.salu(f"s_add_u32 {sWs}, {sWs}, {32*12288}", [sWs], [sWs])
    def dma_kv(self, isv, j, base, rd=(), **kw):
        srd, so = (sV, sVs) if isv else (sK, sKs)
        if isv:
            self.salu(f"s_add_u32 {sT2}, {base}, {sVoff}", [base, sVoff], [sT2]); base = sT2
        for seg in range(3):
            self.salu(f"s_add_u32 m0, {base}, {seg*896}", [base], [M0])
            for rb in range(2):
                self.dma(vKV, srd, so, rb * 3072 + seg * 128, f"{'v' if isv else 'k'}{j}", True, rd=rd, **kw)
        self.salu(f"s_add_u32 {so}, {so}, {SLOT}", [so], [so])

    def x_reads(self, s, rd=(), **kw):
        for e in range(2):
            for t in range(5):
                d = Xf(s, e, t)
                self.rg.op(f"ds_read_b128 {d}, {vxb[e]} offset:{t*2048}", 'dsr', rd=[vxb[e]] + list(rd), wr=[d], **kw)
    def q_phase(self):
        rg, p = self.rg, self.p
        self.pieces = {}
        g0 = rg.nm
        self.dma_x(0)
        for k in range(3): self.dma_wq(k)
        self.waitv(['x0'], wr=['xw0'])
        self.x_reads(0, rd=['xw0'])
        self.dma_x(1, dep=lambda t: [Xf(0, 0, t), Xf(0, 1, t)])
        self.waitv(['wq0'])
        self.barrier(wr=['pub_wq0'])
        self.dma_kv(False, 0, sX2, lo=g0 + 1, hi=g0 + 20)
        self.dma_kv(True, 0, sX2, lo=g0 + 1, hi=g0 + 60)
        self.dma_kv(False, 1, sX0, lo=g0 + 1, hi=g0 + 100)
        for k in range(20):
            s, e = k >> 1, k & 1
            gk = g0 + 54 * k
            if k % 4 == 0: self.mark(f"Q{k}", gk - 1)
            for T in range(12):
                u, half = T >> 1, T & 1
                buf = self.nextbuf()
                for hh in range(2):
                    off = (k % 4) * SLOT + hh * 512 + half * 8 + (u >> 1) * 1024
                    rg.op(f"ds_read_b64_tr_b16 {buf.sub(2*hh, 2)}, {vwb[u & 1]} offset:{off}", 'dsr',
                          rd=[vwb[u & 1], f'pub_wq{k}'], wr=[buf.sub(2 * hh, 2)])
                tiles = [0, 1, 2, 3] + ([4] if 6 * p <= T < 6 * p + 6 else [])
                for t in tiles:
                    acc = QA(p, t, T)
                    rg.mfma(acc, buf, Xf(s, e, t), None if k == 0 else acc)
                if T == 4:
                    pin = gk + 20
                    if k + 1 < 20:
                        self.waitv([f'wq{k+1}'], pin=pin)
                    self.barrier(pin=pin, wr=[f'pub_wq{k+1}', f'free_wq{k-1}'])
                    if k + 3 < 20:
                        self.dma_wq(k + 3, rd=[f'free_wq{k-1}'], hi=gk + 34)
                    if k == 18:
                        self.dma_kv(False, 2, sX1, rd=[f'free_wq{k-1}'], hi=gk + 50)
                        self.dma_kv(True, 1, sX0, rd=[f'free_wq{k-1}'], hi=gk + 70)
                if e == 1 and T == 5 and s + 1 < 10:
                    pin = gk + 24
                    self.waitv([f'x{s+1}'], pin=pin, wr=[f'xw{s+1}'])
                    self.x_reads(s + 1, rd=[f'xw{s+1}'], prio=200)
                    if s + 2 < 10:
                        self.dma_x(s + 2, dep=lambda t: [Xf(s + 1, 0, t), Xf(s + 1, 1, t)], hi=gk + 64)
        self.mark("Q20", g0 + 54 * 20 - 1)
        def conv(src0, dst):
            for r in range(8):
                x = V(src0 + r)
                self.valu(f"v_mul_f32 {x}, {sC}, {x}", [sC, x], [x])
            for r in range(4):
                self.valu(f"v_cvt_pk_bf16_f32 {dst.sub(r)}, {V(src0+2*r)}, {V(src0+2*r+1)}", [V(src0 + 2 * r, 2)], [dst.sub(r)])
        for n in range(24):
            conv(8 * n, V(4 * n, 4))
        gend = rg.nm - 1
        self.barrier(pin=gend, wr=['qend'])
        for u2 in range(3):
            u = 3 * p + u2
            conv(192 + 8 * u2, Qf(4, u))
            rg.op(f"ds_write_b128 {vL16}, {Qf(4, u)} offset:{u*1024}", 'dsw', rd=[vL16, Qf(4, u), 'qend'], wr=[f'q9w{u2}'])
        rg.op("", 'wait', rd=['q9w0', 'q9w1', 'q9w2', 'seq'], wr=['seq'], waitgrp='lds_all')
        self.waitv(['k0'])
        self.barrier(wr=['q9pub', 'pub_k0'])
        for u2 in range(3):
            u = 3 * (1 - p) + u2
            rg.op(f"ds_read_b128 {Qf(4, u)}, {vL16} offset:{u*1024}", 'dsr', rd=[vL16, 'q9pub'], wr=[Qf(4, u)])

    def QK(self, j, tiles, hook=None):
        rg = self.rg
        for kt in range(2):
            for ks in range(6):
                buf = self.nextbuf()
                rg.op(f"ds_read_b128 {buf}, {vkb[ks & 1]} offset:{kt*6144 + (ks >> 1)*1024}", 'dsr', rd=[vkb[ks & 1], f'pub_k{j}'], wr=[buf])
                for t in tiles:
                    c = Sx(kt, t) if ks else (None if j == 0 else NM(t))
                    rg.mfma(Sx(kt, t), buf, Qf(t, ks), c)
        for b in vkb:
            self.valu(f"v_add_u32 {b}, {sdK}, {b}", [sdK, b], [b])
    def MAX(self):
        rg = self.rg
        for t in range(5):
            s = Sx(0, t); a, b = NM(t).sub(0), NM(t).sub(1)
            self.valu(f"v_max3_f32 {a}, {s.sub(0)}, {s.sub(1)}, {s.sub(2)}", [s], [a])
            self.valu(f"v_max3_f32 {a}, {a}, {s.sub(3)}, {vmf[t]}", [a, s, vmf[t]], [a])
            for sw in ('32', '16'):
                self.valu(f"v_mov_b32 {b}, {a}", [a], [b])
                rg.op(f"v_permlane{sw}_swap_b32 {a}, {b}", 'perm', rd=[a, b], wr=[a, b])
                self.valu(f"v_max_f32 {a}, {a}, {b}", [a, b], [a])
            for r in (1, 2, 3, 0):
                self.valu(f"v_sub_f32 {NM(t).sub(r)}, 0, {a}", [a], [NM(t).sub(r)])
            for kt in range(2):
                for r in range(4):
                    x = Sx(kt, t).sub(r)
                    self.valu(f"v_add_f32 {x}, {x}, {NM(t).sub(1)}", [x, NM(t).sub(1)], [x])
    def SM(self, j, tiles):
        rg = self.rg
        for kt in range(2):
            for t in tiles:
                s = Sx(kt, t)
                for r in range(4):
                    rg.op(f"v_exp_f32 {s.sub(r)}, {s.sub(r)}", 'trans', rd=[s.sub(r)], wr=[s.sub(r)])
                for r in range(4):
                    self.valu(f"v_add_f32 {vl[t]}, {vl[t]}, {s.sub(r)}", [vl[t], s.sub(r)], [vl[t]])
                for h in range(2):
                    d = Pf(j, t).sub(2 * kt + h)
                    self.valu(f"v_cvt_pk_bf16_f32 {d}, {s.sub(2*h)}, {s.sub(2*h+1)}", [s.sub(2 * h, 2)], [d])
    def PV(self, j, tiles, last=False):
        rg, p = self.rg, self.p
        for T in range(12):
            buf = self.nextbuf()
            for hh in range(2):
                rg.op(f"ds_read_b64_tr_b16 {buf.sub(2*hh, 2)}, {vvb[T & 3]} offset:{hh*6144 + (T >> 2)*1024}", 'dsr',
                      rd=[vvb[T & 3], f'pub_v{j}'], wr=[buf.sub(2 * hh, 2)])
            for t in tiles:
                first = (j == 0) if t < 4 else False
                rg.mfma(Oa(t, T), buf, Pf(j, t), None if first else Oa(t, T))
        if not last:
            for b in vvb:
                self.valu(f"v_add_u32 {b}, {sdV}, {b}", [sdV, b], [b])
    def a_phase(self):
        rg, p = self.rg, self.p
        own = [0, 1, 2, 3]
        def tl(j): return own + ([4] if j % 2 == p else [])
        for t in range(5): self.valu(f"v_mov_b32 {vl[t]}, 0", [], [vl[t]])
        for T in range(12):
            for r in range(4):
                self.valu(f"v_accvgpr_write_b32 {Oa(4, T).sub(r)}, 0", [], [Oa(4, T).sub(r)])
        self.salu(f"s_sub_u32 {sdK}, {sX0}, {sX2}", [sX0, sX2], [sdK])
        g = rg.nm
        self.QK(0, own + [4])
        self.MAX()
        self.SM(0, tl(0))
        self.waitv(['k1'], pin=g + 30)
        self.barrier(pin=g + 30, wr=['pub_k1'])
        self.barrier(pin=g + 59, wr=['free_k0'])
        self.dma_kv(False, 3, sX2, rd=['free_k0'], hi=g + 60 + 20)
        for j in range(15):
            g = rg.nm
            self.mark(f"A{j}", g - 1)
            self.salu(f"s_mov_b32 {sdV}, {sdK}", [sdK], [sdV])
            self.salu(f"s_sub_u32 {sdK}, {sX1}, {sX0}", [sX0, sX1], [sdK])
            self.QK(j + 1, tl(j + 1))
            self.waitv([f'v{j}'], pin=g + 24)
            self.barrier(pin=g + 24, wr=[f'pub_v{j}', f'free_v{j-1}'])
            self.dma_kv(True, j + 2, sX1, rd=[f'free_v{j-1}'], hi=g + 50)
            self.SM(j + 1, tl(j + 1))
            self.PV(j, tl(j))
            self.waitv([f'k{j+2}'], pin=g + 78)
            self.barrier(pin=g + 78, wr=[f'pub_k{j+2}', f'free_k{j+1}'])
            self.dma_kv(False, j + 4, sX0, rd=[f'free_k{j+1}'], hi=g + 104)
            self.salu(f"s_mov_b32 {sT3}, {sX0}", [sX0], [sT3])
            self.salu(f"s_mov_b32 {sX0}, {sX1}", [sX1], [sX0])
            self.salu(f"s_mov_b32 {sX1}, {sX2}", [sX2], [sX1])
            self.salu(f"s_mov_b32 {sX2}, {sT3}", [sT3], [sX2], hi=g + 106)
        g = rg.nm
        self.mark("A15", g - 1)
        self.waitv(['v15'], pin=g - 14)
        self.barrier(pin=g - 14, wr=['pub_v15'])
        self.PV(15, tl(15), last=True)
        tmp = vmf
        for t in range(5):
            a, b = vl[t], tmp[t]
            for sw in ('32', '16'):
                self.valu(f"v_mov_b32 {b}, {a}", [a], [b])
                rg.op(f"v_permlane{sw}_swap_b32 {a}, {b}", 'perm', rd=[a, b], wr=[a, b])
                self.valu(f"v_add_f32 {a}, {a}, {b}", [a, b], [a])
        gend = rg.nm - 1
        self.barrier(pin=g + 4, wr=['exfree'])
        vE, vEp = V(120), V(121)
        self.valu(f"v_add_u32 {vE}, {sEx}, {vL16}", [sEx, vL16], [vE])
        self.valu(f"v_xor_b32 {vEp}, 0x2000, {vE}", [vE], [vEp])
        toks = []
        for i in range(6):
            T = 6 * (1 - p) + i
            rg.op(f"ds_write_b128 {vE}, {Oa(4, T)} offset:{i*1024}", 'dsw', rd=[vE, Oa(4, T), 'exfree'], wr=[f'ex{i}']); toks.append(f'ex{i}')
        rg.op(f"ds_write_b32 {vE}, {vl[4]} offset:6144", 'dsw', rd=[vE, vl[4], 'exfree'], wr=['ex6']); toks.append('ex6')
        rg.op("", 'wait', rd=toks + ['seq'], wr=['seq'], waitgrp='lds_all')
        self.barrier(wr=['expub'])
        EX = [V(124 + 4 * i, 4) for i in range(6)]
        for i in range(6):
            rg.op(f"ds_read_b128 {EX[i]}, {vEp} offset:{i*1024}", 'dsr', rd=[vEp, 'expub'], wr=[EX[i]])
        rg.op(f"ds_read_b32 {tmp[4]}, {vEp} offset:6144", 'dsr', rd=[vEp, 'expub'], wr=[tmp[4]])
        self.valu(f"v_add_f32 {vl[4]}, {vl[4]}, {tmp[4]}", [vl[4], tmp[4]], [vl[4]])
        for t in range(5):
            rg.op(f"v_rcp_f32 {vl[t]}, {vl[t]}", 'trans', rd=[vl[t]], wr=[vl[t]])
        vSt = V(122)
        self.valu(f"v_and_b32 {vSt}, 0x3ff, {vL16}", [vL16], [vSt])
        n = 0
        for u in range(6):
            if u: self.salu(f"s_add_u32 {sOs}, {sOs}, 18432", [sOs], [sOs])
            for t in range(4):
                w = (n % 10) * 12; n += 1
                for half in range(2):
                    for r in range(4):
                        x = V(w + half * 4 + r)
                        self.valu(f"v_accvgpr_read_b32 {x}, {Oa(t, 2*u+half).sub(r)}", [Oa(t, 2 * u + half).sub(r)], [x])
                        self.valu(f"v_mul_f32 {x}, {x}, {vl[t]}", [x, vl[t]], [x])
                d = V(w + 8, 4)
                for r in range(4):
                    self.valu(f"v_cvt_pk_bf16_f32 {d.sub(r)}, {V(w+2*r)}, {V(w+2*r+1)}", [V(w + 2 * r, 2)], [d.sub(r)])
                rg.op(f"buffer_store_dwordx4 {d}, {vSt}, {sO}, {sOs} offen" + (f" offset:{t*1024}" if t else ""), 'vst', rd=[d, vSt, sO, sOs], wr=[])
        for u2 in range(3):
            u = 3 * p + u2
            w = (n % 10) * 12; n += 1
            for half in range(2):
                for r in range(4):
                    x = V(w + half * 4 + r); e = EX[2 * u2 + half].sub(r)
                    self.valu(f"v_accvgpr_read_b32 {x}, {Oa(4, 2*u+half).sub(r)}", [Oa(4, 2 * u + half).sub(r)], [x])
                    self.valu(f"v_add_f32 {x}, {x}, {e}", [x, e], [x])
                    self.valu(f"v_mul_f32 {x}, {x}, {vl[4]}", [x, vl[4]], [x])
            d = V(w + 8, 4)
            for r in range(4):
                self.valu(f"v_cvt_pk_bf16_f32 {d.sub(r)}, {V(w+2*r)}, {V(w+2*r+1)}", [V(w + 2 * r, 2)], [d.sub(r)])
            self.salu(f"s_add_u32 {sT}, {sO9}, {u*18432}", [sO9], [sT])
            rg.op(f"buffer_store_dwordx4 {d}, {vSt}, {sO}, {sT} offen", 'vst', rd=[d, vSt, sO, sT], wr=[])

def fold(seq, names, period, label, cnt):
    pos = {o.note: i for i, o in enumerate(seq) if o.kind == 'mark' and o.note in names}
    idx = [pos[n] for n in names]
    chunks = [text_of(seq[idx[i]:idx[i + 1]]) for i in range(len(idx) - 1)]
    best = (1, 0)
    for st in range(len(chunks) - period + 1):
        n = 1
        while st + (n + 1) * period <= len(chunks) and chunks[st + n * period: st + (n + 1) * period] == chunks[st: st + period]: n += 1
        if n > best[0]: best = (n, st)
    n, st = best
    return idx, chunks, n, st

def emit_folded(seq, groups, cnt):
    lines = []
    cur = 0
    for names, period, label in groups:
        idx, chunks, n, st = fold(seq, names, period, label, cnt)
        print(f"  fold {label}: {n} x {period} chunks from {st} (of {len(chunks)})")
        lines += text_of(seq[cur:idx[0]])
        for c in chunks[:st]: lines += c
        if n > 1:
            lines.append(f"    s_mov_b32 {cnt}, {n}")
            lines.append(f"{label}:")
            for c in chunks[st:st + period]: lines += c
            lines += [f"    s_sub_u32 {cnt}, {cnt}, 1", f"    s_cmp_lg_u32 {cnt}, 0", f"    s_cbranch_scc1 {label}"]
        else:
            for c in chunks[st:st + period]: lines += c
        for c in chunks[st + n * period:]: lines += c
        cur = idx[-1]
    lines += text_of(seq[cur:])
    return lines

def prologue():
    L = []
    a = L.append
    a("s_cmp_ge_u32 s2, 512")
    a("s_cbranch_scc1 K1_end")
    a("s_load_dwordx8 s[52:59], s[0:1], 0")
    a("s_load_dwordx8 s[60:67], s[0:1], 40")
    a("s_load_dwordx2 s[68:69], s[0:1], 96")
    a("v_lshrrev_b32 v1, 6, v0")
    a("v_and_b32 v0, 63, v0")
    a(f"v_readfirstlane_b32 {sWv}, v1")
    a("s_lshr_b32 s70, s2, 8")
    a("s_and_b32 s71, s2, 3")
    a("s_lshl_b32 s71, s71, 3")
    a("s_bfe_u32 s72, s2, 0x30003")
    a("s_add_u32 s71, s71, s72")
    a("s_bfe_u32 s72, s2, 0x10002")
    a("s_lshl_b32 s72, s72, 2")
    a("s_bfe_u32 s73, s2, 0x20006")
    a("s_add_u32 s72, s72, s73")
    a(f"s_lshr_b32 {sUnit}, {sWv}, 1")
    a(f"s_and_b32 {sPar}, {sWv}, 1")
    a("s_lshl_b32 s73, s72, 1")
    a(f"s_add_u32 s73, s73, {sUnit}")
    a("s_waitcnt lgkmcnt(0)")
    a("s_cmp_eq_u32 s70, 0")
    for i in range(4):
        a(f"s_cselect_b64 s[{52+2*i}:{53+2*i}], s[{52+2*i}:{53+2*i}], s[{60+2*i}:{61+2*i}]")
    a("s_mul_i32 s74, s73, 184320")
    a("s_add_u32 s4, s52, s74"); a("s_addc_u32 s5, s53, 0"); a("s_mov_b32 s6, 184320"); a("s_mov_b32 s7, 0x00020000")
    a("s_mul_i32 s74, s71, 384")
    a("s_add_u32 s8, s58, s74"); a("s_addc_u32 s9, s59, 0"); a("s_sub_u32 s10, 7864320, s74"); a("s_mov_b32 s11, 0x00020000")
    a("s_lshl_b32 s74, s73, 5"); a("s_add_u32 s74, s74, s71"); a("s_mul_i32 s74, s74, 196608")
    a("s_add_u32 s12, s54, s74"); a("s_addc_u32 s13, s55, 0"); a("s_mov_b32 s14, 196608"); a("s_mov_b32 s15, 0x00020000")
    a("s_add_u32 s16, s56, s74"); a("s_addc_u32 s17, s57, 0"); a("s_mov_b32 s18, 196608"); a("s_mov_b32 s19, 0x00020000")
    a("s_lshl_b32 s74, s70, 3"); a("s_add_u32 s74, s74, s72"); a("s_mul_i32 s74, s74, 192")
    a("s_mul_i32 s75, s71, 6"); a("s_add_u32 s74, s74, s75"); a("s_mul_i32 s74, s74, 18432")
    a("s_add_u32 s20, s68, s74"); a("s_addc_u32 s21, s69, 0"); a(f"s_mov_b32 s22, {6*18432}"); a("s_mov_b32 s23, 0x00020000")
    a(f"s_mul_i32 {sO9}, {sUnit}, 9216")
    a(f"s_lshl_b32 s74, {sPar}, 12")
    a(f"s_add_u32 {sOs}, {sO9}, s74")
    a(f"s_add_u32 {sO9}, {sO9}, 8192")
    a(f"s_mov_b32 {sXs}, 0")
    a(f"s_mul_i32 {sWs}, {sWv}, {8*12288}")
    a(f"s_mul_i32 {sKs}, {sPar}, 6144")
    a(f"s_mov_b32 {sVs}, {sKs}")
    a(f"s_cmp_eq_u32 {sUnit}, 0")
    a(f"s_cselect_b32 s74, 0, 151552")
    a(f"s_mov_b32 {sVoff}, -12288")
    a(f"s_cselect_b32 {sVoff}, 12288, {sVoff}")
    a(f"s_lshl_b32 s75, {sVoff}, 1")
    a(f"s_add_u32 {sX2}, s74, {sKs}")
    a(f"s_add_u32 {sX0}, {sX2}, s75")
    a(f"s_add_u32 {sX1}, {sX0}, s75")
    a(f"s_mul_i32 {sXb}, {sWv}, 10240"); a(f"s_add_u32 {sXb}, {sXb}, {XS_BASE}")
    a(f"s_mul_i32 {sWb}, {sWv}, 3072")
    a(f"s_mov_b32 {sC}, {f32(CSCALE)}")
    a(f"s_lshl_b32 {sEx}, {sWv}, 13"); a(f"s_add_u32 {sEx}, {sEx}, {65536 - SPARE}")
    a(f"s_mul_i32 s76, {sUnit}, 6144"); a(f"s_sub_u32 {sEx}, {sEx}, s76")
    a(f"s_add_u32 s76, s76, {SPARE}")
    a("v_lshrrev_b32 v1, 3, v0")
    a("v_and_b32 v2, 7, v0")
    a("v_and_b32 v3, 6, v1")
    a("v_xor_b32 v3, v2, v3")
    a("v_lshlrev_b32 v3, 4, v3")
    a(f"v_mul_u32_u24 {vKV}, 384, v1"); a(f"v_add_u32 {vKV}, {vKV}, v3")
    a(f"v_mul_u32_u24 {vXo}, 1280, v1"); a(f"v_add_u32 {vXo}, {vXo}, v3")
    a(f"s_lshl_b32 s77, {sPar}, 2")
    a("v_xor_b32 v3, s77, v2"); a("v_lshlrev_b32 v3, 4, v3")
    a(f"v_mul_u32_u24 {vWo}, 12288, v1"); a(f"v_add_u32 {vWo}, {vWo}, v3")
    a("v_and_b32 v1, 15, v0"); a("v_lshrrev_b32 v2, 4, v0")
    a("v_and_b32 v3, 7, v1")
    a("v_and_b32 v4, 6, v1")
    a("v_xor_b32 v4, v2, v4")
    a("v_lshl_add_u32 v4, v3, 3, v4")
    a("v_lshlrev_b32 v4, 4, v4")
    a("v_xor_b32 v5, 64, v4")
    a("v_lshrrev_b32 v6, 3, v1")
    a("v_mul_u32_u24 v7, 3072, v6"); a("v_add_u32 v7, s74, v7")
    a(f"v_add_u32 {vkb[0]}, v7, v4"); a(f"v_add_u32 {vkb[1]}, v7, v5")
    a(f"v_lshlrev_b32 v7, 10, v6"); a(f"v_add_u32 v7, {sXb}, v7")
    a(f"v_add_u32 {vxb[0]}, v7, v4"); a(f"v_add_u32 {vxb[1]}, v7, v5")
    a("v_bfe_u32 v3, v0, 2, 2"); a("v_and_b32 v4, 3, v0")
    a("v_and_b32 v5, 1, v2")
    a("v_lshl_add_u32 v6, v5, 2, v3")
    a("v_and_b32 v7, 6, v6")
    a("v_lshrrev_b32 v8, 1, v4")
    a("v_xor_b32 v7, v7, v8")
    a("v_lshl_add_u32 v7, v6, 3, v7"); a("v_lshlrev_b32 v7, 4, v7")
    a("v_and_b32 v8, 1, v4"); a("v_lshl_add_u32 v7, v8, 3, v7")
    a("v_lshrrev_b32 v8, 1, v2"); a("v_mul_u32_u24 v8, 3072, v8")
    a(f"s_add_u32 s77, s74, {sVoff}")
    a("v_add_u32 v8, s77, v8")
    for q in range(4):
        a(f"v_xor_b32 v9, {q*32}, v7"); a(f"v_add_u32 {vvb[q]}, v8, v9")
    a("v_lshlrev_b32 v7, 2, v5"); a("v_xor_b32 v7, v7, v4")
    a("v_lshl_add_u32 v7, v3, 3, v7"); a("v_lshlrev_b32 v7, 4, v7")
    a("v_mul_u32_u24 v8, 3072, v2"); a(f"v_add_u32 v8, {WQ_RING}, v8")
    a(f"v_add_u32 {vwb[0]}, v8, v7"); a("v_xor_b32 v7, 64, v7"); a(f"v_add_u32 {vwb[1]}, v8, v7")
    a(f"v_lshlrev_b32 {vL16}, 4, v0"); a(f"v_add_u32 {vL16}, s76, {vL16}")
    for t in range(5): a(f"v_mov_b32 {vmf[t]}, 0xff7fffff")
    a(f"s_cmp_eq_u32 {sPar}, 1")
    a("s_cbranch_scc1 K1_par1")
    return ['    ' + x for x in L]

def gen_k1():
    lines = prologue()
    nb = []
    for p in range(2):
        g = Gen(p)
        g.q_phase()
        g.a_phase()
        seq = g.rg.schedule()
        print(f"parity {p}: mfma {g.rg.nm} est cycles {g.rg.est_cycles} (ideal {16*g.rg.nm}) stall {g.rg.nstall}")
        fin, vq = finalize(seq)
        nb.append(g.nbar)
        if p == 1: lines.append("K1_par1:")
        lines += emit_folded(fin, [([f"Q{k}" for k in range(0, 21, 4)], 1, f"K1_q{p}"), ([f"A{j}" for j in range(16)], 2, f"K1_a{p}")], sCnt)
        lines.append("    s_endpgm")
    assert nb[0] == nb[1]
    lines.append("K1_end:")
    lines.append("    s_endpgm")
    return lines

if __name__ == "__main__":
    L = gen_k1()
    print(len(L), "lines")
    open("k1_body.txt", "w").write("\n".join(L))
```

```python
from sched import *
from k1 import emit_folded, f32

sOb, sWO, sOut = S(4, 4), S(8, 4), S(12, 4)
sWv, sOs, sWs, sLb, sT, sCnt, sOo = S(16), S(17), S(18), S(19), S(20), S(21), S(22)
vL16, vL16b = V(192), V(193)
vWo = [V(194), V(195)]
vtb = [V(196 + i) for i in range(8)]
vEw = [V(204 + i) for i in range(3)]
vEr, vOo = V(207), V(208)
NB = 4
def ACC(T, rt): return V((T * 6 + rt) * 4, 4)
def Of(i, rt): return A((i % NB) * 24 + rt * 4, 4)
RING = [A(96 + 4 * i, 4) for i in range(8)]
NI = 48

def gen_body():
    rg = Region()
    pieces = {}
    cnt = [0]
    lastread = {}
    def loads(i, **kw):
        for rt in range(6):
            vo = vL16 if rt < 4 else vL16b
            off = (rt % 4) * 1024
            rg.op(f"buffer_load_dwordx4 {Of(i, rt)}, {vo}, {sOb}, {sOs} offen" + (f" offset:{off}" if off else ""), 'vld', rd=[vo, sOb, sOs], wr=[Of(i, rt)], **kw)
        rg.op(f"s_add_u32 {sOs}, {sOs}, {4*18432}", 'salu', [sOs], [sOs])
        for q in range(8):
            rg.op(f"s_add_u32 m0, {sLb}, {(i % NB) * 8192 + q * 1024}", 'salu', [sLb], [M0])
            cnt[0] += 1; tok = f"ld{cnt[0]}"; pieces.setdefault(i, []).append(tok)
            rg.op(f"buffer_load_dwordx4 {vWo[q & 1]}, {sWO}, {sWs} offen lds", 'dma', rd=[vWo[q & 1], sWO, sWs, M0], wr=[tok], grp=f"w{i}", **kw)
            if q & 1:
                inc = 10240 if q < 7 else 128 * 1280 - 3 * 10240
                rg.op(f"s_add_u32 {sWs}, {sWs}, {inc}", 'salu', [sWs], [sWs])
    for i in range(NB - 1): loads(i)
    fr = 0
    rg.op("", 'wait', rd=pieces[0] + ['seq'], wr=['seq', 'pub0'], waitgrp=['w0'])
    for i in range(NI):
        g = rg.nm
        if i % NB == 0: rg.op("", 'mark', pin=g - 1, note=f"O{i}")
        if i + NB - 1 < NI:
            loads(i + NB - 1, lo=g - 1, hi=g + 30)
        for T in range(8):
            buf = RING[fr % 8]; fr += 1
            for hh in range(2):
                rg.op(f"ds_read_b64_tr_b16 {buf.sub(2*hh, 2)}, {vtb[T]} offset:{(i % NB) * 8192 + hh * 4096}", 'dsr', rd=[vtb[T], f'pub{i}'], wr=[buf.sub(2 * hh, 2)])
            for rt in range(6):
                rg.mfma(ACC(T, rt), buf, Of(i, rt), None if i == 0 else ACC(T, rt))
        if i + 1 < NI:
            rg.op("", 'wait', rd=pieces[i + 1] + ['seq'], wr=['seq', f'pub{i+1}'], waitgrp=[f'w{i+1}'], pin=g + 32)
    rg.op("", 'mark', pin=rg.nm - 1, note=f"O{NI}")
    gend = rg.nm - 1
    rg.op("s_barrier", 'bar', rd=['seq'], wr=['seq', 'exfree'], pin=gend - 5)
    toks = []
    for d in range(1, 4):
        for n in range(12):
            T, rt = 2 * d + n // 6, n % 6
            rg.op(f"ds_write_b128 {vEw[d-1]}, {ACC(T, rt)} offset:{n*1024}", 'dsw', rd=[vEw[d - 1], ACC(T, rt), 'exfree'], wr=[f'e{d}_{n}']); toks.append(f'e{d}_{n}')
    rg.op("", 'wait', rd=toks + ['seq'], wr=['seq'], waitgrp='lds_all')
    rg.op("s_barrier", 'bar', rd=['seq'], wr=['seq', 'expub'])
    for rt in range(6):
        for T in range(2):
            n = T * 6 + rt
            for d in range(1, 4):
                x = ACC(2 * d + T, rt)
                rg.op(f"ds_read_b128 {x}, {vEr} offset:{(d-1)*12288 + n*1024}", 'dsr', rd=[vEr, 'expub'], wr=[x])
    for rt in range(6):
        for T in range(2):
            a = ACC(T, rt)
            for r in range(4):
                b, c, d = (ACC(2 * k + T, rt).sub(r) for k in (1, 2, 3))
                rg.op(f"v_add_f32 {a.sub(r)}, {a.sub(r)}, {b}", 'valu', [a.sub(r), b], [a.sub(r)])
                rg.op(f"v_add_f32 {c}, {c}, {d}", 'valu', [c, d], [c])
                rg.op(f"v_add_f32 {a.sub(r)}, {a.sub(r)}, {c}", 'valu', [a.sub(r), c], [a.sub(r)])
        o = V(212 + 4 * rt, 4)
        for T in range(2):
            a = ACC(T, rt)
            for h in range(2):
                rg.op(f"v_cvt_pk_bf16_f32 {o.sub(2*T+h)}, {a.sub(2*h)}, {a.sub(2*h+1)}", 'valu', [a.sub(2 * h, 2)], [o.sub(2 * T + h)])
        for sw in ('32', '16'):
            for h in range(2):
                rg.op(f"v_permlane{sw}_swap_b32 {o.sub(h)}, {o.sub(2+h)}", 'perm', rd=[o.sub(h), o.sub(2 + h)], wr=[o.sub(h), o.sub(2 + h)])
        rg.op(f"buffer_store_dwordx4 {o}, {vOo}, {sOut}, {sOo} offen", 'vst', rd=[o, vOo, sOut, sOo], wr=[])
        rg.op(f"s_add_u32 {sOo}, {sOo}, 40960", 'salu', [sOo], [sOo])
    seq = rg.schedule()
    print(f"K2: mfma {rg.nm} est {rg.est_cycles} ideal {16*rg.nm} stall {rg.nstall}")
    fin, vq = finalize(seq)
    return emit_folded(fin, [([f"O{i}" for i in range(0, NI + 1, NB)], 1, "K2_loop")], sCnt)

def gen_k2():
    L = []; a = L.append
    a("s_cmp_ge_u32 s2, 240")
    a("s_cbranch_scc1 K2_end")
    a("s_load_dwordx2 s[52:53], s[0:1], 32")
    a("s_load_dwordx4 s[56:59], s[0:1], 72")
    a("s_load_dwordx2 s[60:61], s[0:1], 96")
    a("v_lshrrev_b32 v1, 6, v0")
    a("v_and_b32 v0, 63, v0")
    a(f"v_readfirstlane_b32 {sWv}, v1")
    a("s_and_b32 s70, s2, 7"); a("s_lshr_b32 s71, s2, 3")
    a("s_cmp_ge_u32 s71, 15"); a("s_cselect_b32 s72, 1, 0"); a("s_cselect_b32 s73, 15, 0")
    a("s_sub_u32 s71, s71, s73")
    a("s_lshl_b32 s70, s70, 1"); a("s_add_u32 s70, s70, s72")
    a("s_mul_i32 s72, s71, 52"); a("s_lshr_b32 s72, s72, 8")
    a("s_mul_i32 s73, s72, 5"); a("s_sub_u32 s73, s71, s73")
    a("s_lshr_b32 s74, s70, 3"); a("s_and_b32 s75, s70, 7")
    a("s_waitcnt lgkmcnt(0)")
    a("s_cmp_eq_u32 s74, 0")
    a("s_cselect_b64 s[52:53], s[52:53], s[56:57]")
    a(f"s_mul_i32 s76, s70, {192*18432}"); a("s_mul_i32 s77, s72, 6144"); a("s_add_u32 s76, s76, s77")
    a("s_add_u32 s4, s60, s76"); a("s_addc_u32 s5, s61, 0"); a(f"s_sub_u32 s6, {192*18432}, s77"); a("s_mov_b32 s7, 0x00020000")
    a("s_lshl_b32 s76, s73, 8")
    a("s_add_u32 s8, s52, s76"); a("s_addc_u32 s9, s53, 0"); a("s_sub_u32 s10, 7864320, s76"); a("s_mov_b32 s11, 0x00020000")
    a("s_mov_b32 s12, s58"); a("s_mov_b32 s13, s59"); a("s_mov_b32 s14, 5898240"); a("s_mov_b32 s15, 0x00020000")
    a(f"s_mul_i32 {sOs}, {sWv}, 18432")
    a(f"s_mul_i32 {sWs}, {sWv}, {32*1280}")
    a(f"s_lshl_b32 {sLb}, {sWv}, 15")
    a("s_mul_i32 s76, s75, 288"); a("s_mul_i32 s77, s72, 96"); a("s_add_u32 s76, s76, s77"); a("s_mul_i32 s76, s76, 2560")
    a("s_mul_i32 s77, s74, 1280"); a("s_add_u32 s76, s76, s77"); a("s_lshl_b32 s77, s73, 8"); a("s_add_u32 s76, s76, s77")
    a(f"s_lshl_b32 s77, {sWv}, 6"); a(f"s_add_u32 {sOo}, s76, s77")
    a(f"v_lshlrev_b32 {vL16}, 4, v0"); a(f"v_add_u32 {vL16b}, 4096, {vL16}")
    a("v_lshrrev_b32 v1, 4, v0"); a("v_and_b32 v2, 15, v0")
    a("v_lshlrev_b32 v3, 1, v1"); a("v_xor_b32 v3, v2, v3"); a("v_lshlrev_b32 v3, 4, v3")
    a("v_mul_u32_u24 v4, 1280, v1")
    a(f"v_add_u32 {vWo[0]}, v4, v3")
    a("v_xor_b32 v3, 128, v3"); a("v_add_u32 v4, 5120, v4"); a(f"v_add_u32 {vWo[1]}, v4, v3")
    a(f"v_mul_u32_u24 {vOo}, 2560, v2"); a(f"v_lshl_add_u32 {vOo}, v1, 4, {vOo}")
    a("v_bfe_u32 v3, v0, 2, 2"); a("v_and_b32 v4, 3, v0")
    a("v_lshl_add_u32 v5, v1, 2, v3")
    a("v_and_b32 v6, 7, v5"); a("v_lshlrev_b32 v6, 1, v6")
    a("v_lshrrev_b32 v7, 1, v4"); a("v_xor_b32 v6, v6, v7"); a("v_lshlrev_b32 v6, 4, v6")
    a("v_and_b32 v7, 1, v4"); a("v_lshl_add_u32 v6, v7, 3, v6")
    a("v_xor_b32 v6, s77, v6")
    a("v_lshlrev_b32 v5, 8, v5"); a(f"v_add_u32 v5, {sLb}, v5")
    for T in range(8):
        a(f"v_xor_b32 v7, {T*32}, v6"); a(f"v_add_u32 {vtb[T]}, v5, v7")
    for d in range(1, 4):
        a(f"s_xor_b32 s76, {sWv}, {d}"); a(f"s_mul_i32 s76, s76, 36864"); a(f"s_add_u32 s76, s76, {(d-1)*12288}")
        a(f"v_add_u32 {vEw[d-1]}, s76, {vL16}")
    a(f"s_mul_i32 s76, {sWv}, 36864"); a(f"v_add_u32 {vEr}, s76, {vL16}")
    L = ['    ' + x for x in L]
    L += gen_body()
    L += ["K2_end:", "    s_endpgm"]
    return L
```

```python
import re

def R(kind, i, n=1):
    return [(kind, i + k) for k in range(n)]

def rn(kind, i, n=1):
    return f"{kind}{i}" if n == 1 else f"{kind}[{i}:{i+n-1}]"

class Reg:
    def __init__(self, kind, i, n=1):
        self.kind, self.i, self.n = kind, i, n
    def __str__(self):
        return rn(self.kind, self.i, self.n)
    def regs(self):
        return R(self.kind, self.i, self.n)
    def sub(self, k, n=1):
        assert k + n <= self.n
        return Reg(self.kind, self.i + k, n)

def V(i, n=1): return Reg('v', i, n)
def A(i, n=1): return Reg('a', i, n)
def S(i, n=1): return Reg('s', i, n)
M0 = Reg('m0', 0)
M0.__class__ = type('M0Reg', (Reg,), {'__str__': lambda self: 'm0'})

def flat(xs):
    out = []
    for x in xs:
        if isinstance(x, Reg): out += x.regs()
        elif isinstance(x, tuple): out.append(x)
        elif isinstance(x, str): out.append(('tok', x))
        elif x is None: pass
        else: raise TypeError(x)
    return out

SLOTS = dict(valu=1, trans=2, perm=2, dsr=1, dsw=2, vld=2, dma=2, vst=2, pk=1)
SCALAR = ('salu', 'wait', 'bar', 'nop', 'mark')

class Op:
    __slots__ = ('text', 'kind', 'rd', 'wr', 'creads', 'lo', 'hi', 'pin', 'grp', 'waitgrp', 'idx', 'preds', 'succs',
                 't', 'dl', 'npred', 'ninstr', 'mi', 'note', 'prio')
    def __init__(self, text, kind, rd=(), wr=(), creads=(), lo=None, hi=None, pin=None, grp=None, waitgrp=None, note=None, prio=0):
        self.text, self.kind = text, kind
        self.rd, self.wr, self.creads = flat(rd), flat(wr), flat(creads)
        self.lo, self.hi, self.pin, self.grp, self.waitgrp = lo, hi, pin, grp, waitgrp
        self.preds, self.succs = [], []
        self.t = None; self.dl = None; self.note = note; self.prio = prio
        self.ninstr = text.count('\n') + 1 if kind != 'mark' else 0
        self.mi = None

LDS_LAT = 144

def edge_lat(p, c, typ, reg):
    if typ == 'raw':
        if p.kind == 'mfma':
            if c.kind == 'mfma' and reg in c.creads and p.wr == c.creads: return 16
            return 48
        if p.kind == 'dsr': return LDS_LAT
        if p.kind == 'vld': return 600
        if p.kind in ('valu', 'trans', 'perm', 'pk'):
            base = 8 if p.kind in ('trans', 'perm') else 4
            if c.kind == 'mfma' or c.kind == 'perm': return base + 8
            if p.kind == 'trans': return 12
            if reg[0] == 's' or reg[0] == 'tok': return 24
            return base
        if p.kind == 'salu':
            if reg[0] == 'm0': return 8
            return 4
        return 4
    if typ == 'war':
        if p.kind == 'mfma' and reg in p.creads and c.kind != 'mfma': return 20
        if p.kind in ('vst', 'dsw'): return 16
        return 4
    if typ == 'waw':
        if p.kind == 'mfma' and c.kind != 'mfma': return 48
        if p.kind == 'dsr': return LDS_LAT
        return 4
    return 4

class Region:
    def __init__(self):
        self.ops = []
        self.nm = 0
    def add(self, op):
        op.idx = len(self.ops)
        if op.kind == 'mfma':
            op.mi = self.nm; self.nm += 1
        self.ops.append(op)
        return op
    def mfma(self, d, a, b, c):
        cs = '0' if c is None else str(c)
        return self.add(Op(f"v_mfma_f32_16x16x32_bf16 {d}, {a}, {b}, {cs}", 'mfma', rd=[a, b] + ([c] if c is not None else []), wr=[d],
                           creads=[c] if c is not None else []))
    def op(self, text, kind, rd=(), wr=(), **kw):
        return self.add(Op(text, kind, rd, wr, **kw))

    def build_deps(self):
        lastw, readers = {}, {}
        for o in self.ops:
            seen = {}
            def dep(p, typ, reg):
                if p is o: return
                l = edge_lat(p, o, typ, reg)
                if seen.get(p.idx, -1) < l: seen[p.idx] = l
            for r in o.rd:
                if r in lastw: dep(lastw[r], 'raw', r)
            for r in o.wr:
                if r in lastw: dep(lastw[r], 'waw', r)
                for p in readers.get(r, ()): dep(p, 'war', r)
            for r in o.rd: readers.setdefault(r, []).append(o)
            for r in o.wr:
                lastw[r] = o; readers[r] = []
            for pi, l in seen.items():
                p = self.ops[pi]
                o.preds.append((p, l)); p.succs.append((o, l))

    def schedule(self):
        self.build_deps()
        ops = self.ops
        INF = 1 << 60
        for o in reversed(ops):
            if o.kind == 'mfma': o.dl = 16 * o.mi; continue
            d = INF
            if o.pin is not None: d = 16 * o.pin + 4
            if o.hi is not None: d = min(d, 16 * o.hi + 12)
            for s, l in o.succs: d = min(d, s.dl - l)
            if d >= INF: d = 16 * self.nm + o.idx
            o.dl = d - o.prio
        for o in ops: o.npred = len(o.preds)
        spine = [o for o in ops if o.kind == 'mfma']
        avail = [o for o in ops if o.kind != 'mfma' and o.npred == 0]
        out = []
        t = 0
        gap = -1
        pend = {'q': []}
        def ready_t(o):
            return max([p.t + l for p, l in o.preds], default=-INF)
        def place(o, tt):
            o.t = tt; out.append(o)
            for s, l in o.succs:
                s.npred -= 1
                if s.npred == 0 and s.kind != 'mfma': avail.append(s)
        def allowed(o):
            if o.pin is not None: return gap >= o.pin
            if o.lo is not None and gap < o.lo: return False
            return True
        def pick(tt, maxslots, scalar_only=False, force=False):
            best = None
            for o in avail:
                if not allowed(o): continue
                sc = o.kind in SCALAR
                if scalar_only and not (sc and o.ninstr <= 1): continue
                need = o.ninstr if sc else SLOTS[o.kind]
                if need > maxslots and not force: continue
                if ready_t(o) > tt: continue
                if best is None or (o.dl, o.idx) < (best.dl, best.idx): best = o
            return best
        def cost(o):
            return 4 * (o.ninstr if o.kind in SCALAR else SLOTS[o.kind])
        waited = set()
        def needs_wait(m):
            return any(p.kind == 'dsr' and p.t is not None and p.idx not in waited for p, l in m.preds)
        si = 0
        last_m = -INF
        nstall = 0
        while si < len(spine) or avail:
            m = spine[si] if si < len(spine) else None
            must = [o for o in avail if allowed(o) and ((o.pin is not None and o.pin <= gap) or (o.hi is not None and o.hi <= gap))]
            if m is not None and m.npred == 0 and not must:
                tm = max(t, last_m + 16, ready_t(m))
                room = (tm - t) // 4
                o = pick(t, room) if room > 0 else None
                if o is not None:
                    avail.remove(o); place(o, t); t += cost(o); continue
                if room > 1:
                    o = pick(t + 4, room - 1)
                    if o is not None:
                        t += 4; avail.remove(o); place(o, t); t += cost(o); continue
                if tm > last_m + 16 and last_m > -INF: nstall += tm - (last_m + 16)
                place(m, tm); last_m = tm; gap = m.mi; si += 1
                t = tm + 4
                nxt = spine[si] if si < len(spine) else None
                if nxt is not None and needs_wait(nxt):
                    mx = max(p.t for p, l in nxt.preds if p.kind == 'dsr' and p.t is not None)
                    for q in out[-400:]:
                        if q.kind == 'dsr' and q.t <= mx: waited.add(q.idx)
                    w = Op('', 'mark', note='waitslot'); w.t = t; w.waitgrp = nxt; out.append(w)
                else:
                    while True:
                        o = pick(t, 1, scalar_only=True)
                        if o is None: break
                        avail.remove(o); place(o, t)
                        if o.ninstr: break
                t = tm + 8
                continue
            cand = must if must else [o for o in avail if allowed(o)]
            if not cand:
                if m is None or m.npred:
                    cand = avail
                    assert cand, "deadlock in scheduler"
                    raise RuntimeError("scheduler deadlock: window closed for needed op: %s (gap %d) blocked mfma %s" % (cand[0].text, gap, m.text if m else None))
            rdy = [o for o in cand if ready_t(o) <= t]
            if not rdy and must:
                rdy2 = [o for o in avail if allowed(o) and ready_t(o) <= t]
                if rdy2: rdy = rdy2
            if rdy:
                o = min(rdy, key=lambda o: (o.dl, o.idx)); tt = t
            else:
                o = min(cand, key=lambda o: (ready_t(o), o.dl, o.idx)); tt = ready_t(o)
            avail.remove(o); place(o, tt); t = tt + cost(o)
        self.est_cycles = t
        self.nstall = nstall
        return out

def finalize(seq, lgkm_in=0, vm_in=None):
    out = []
    lq = []
    vq = list(vm_in or [])
    dsw_of = {}
    vld_of = {}
    def wait_l(n):
        n = min(n, 15)
        out.append(Op(f"s_waitcnt lgkmcnt({n})", 'wait'))
        del lq[:len(lq) - n]
    def wait_v(n):
        assert n <= 63, n
        out.append(Op(f"s_waitcnt vmcnt({n})", 'wait'))
        del vq[:len(vq) - n]
    def need(o, q, table):
        k = -1
        for r in o.rd + o.wr:
            p = table.get(r)
            if p is not None and p in q: k = max(k, q.index(p))
        return k
    for o in seq:
        if o.kind == 'mark' and o.note == 'waitslot':
            k = need(o.waitgrp, lq, dsw_of)
            if k >= 0: wait_l(len(lq) - 1 - k)
            continue
        if o.kind == 'wait' and o.waitgrp is not None:
            if o.waitgrp == 'lds_all':
                if lq: wait_l(0)
                continue
            if o.waitgrp == 'vm_all':
                wait_v(0); continue
            gs = o.waitgrp if isinstance(o.waitgrp, (list, tuple, set)) else [o.waitgrp]
            k = max([i for i, p in enumerate(vq) if p.grp in gs], default=-1)
            if k >= 0: wait_v(len(vq) - 1 - k)
            continue
        k = need(o, lq, dsw_of)
        if k >= 0: wait_l(len(lq) - 1 - k)
        k = need(o, vq, vld_of)
        if k >= 0: wait_v(len(vq) - 1 - k)
        out.append(o)
        if o.kind in ('dsr', 'dsw'):
            lq.append(o)
            if o.kind == 'dsr':
                for r in o.wr: dsw_of[r] = o
        if o.kind in ('vld', 'dma', 'vst'):
            vq.append(o)
            if o.kind == 'vld':
                for r in o.wr: vld_of[r] = o
    return hazards(out), vq

VAL = ('valu', 'trans', 'perm', 'pk')
def req_states(p, c):
    n = 0
    pw, cr, cw = set(p.wr), set(c.rd), set(c.wr)
    raw = pw & cr
    if p.kind == 'mfma':
        if c.kind == 'mfma':
            ab = cr - set(c.creads)
            if pw & ab: n = max(n, 8)
            if pw & set(c.creads) and p.wr != c.creads: n = max(n, 6)
        else:
            if raw or (pw & cw): n = max(n, 8)
            if c.kind in VAL and set(p.creads) & cw: n = max(n, 3)
    elif p.kind in VAL:
        vraw = {r for r in raw if r[0] in 'va'}
        sraw = {r for r in raw if r[0] == 's' or r == ('tok', 'vcc')}
        if vraw and c.kind == 'mfma': n = max(n, 2)
        if vraw and c.kind == 'perm': n = max(n, 2)
        if vraw and p.kind == 'trans' and c.kind != 'trans': n = max(n, 1)
        if vraw and ('readfirstlane' in c.text or 'readlane' in c.text): n = max(n, 1)
        if vraw and 'dpp' in c.text: n = max(n, 2)
        if sraw and c.kind in VAL: n = max(n, 2)
        if sraw and c.kind in ('vld', 'dma', 'vst'): n = max(n, 5)
        if sraw and c.kind == 'salu': n = max(n, 1)
    elif p.kind == 'salu':
        if ('m0', 0) in raw and c.kind == 'dma': n = max(n, 1)
    elif p.kind in ('vst', 'dsw'):
        if set(p.rd) & cw and c.kind != 'salu': n = max(n, 2)
    return n

def hazards(seq):
    out = []
    nn = 0
    for o in seq:
        if o.kind == 'mark':
            out.append(o); continue
        need = 0
        states = 0; t = 0;
        back = []
        for p in reversed(out):
            if p.kind == 'mark': continue
            back.append(p)
            if len(back) >= 10: break
        for j, p in enumerate(back):
            r = req_states(p, o)
            if r == 0: continue
            between = list(reversed(back[:j]))
            tt = 0; lastm = 0 if p.kind == 'mfma' else None
            prev_cost = 4 * max(1, p.ninstr)
            if p.kind != 'mfma': prev_cost = 4
            for q in between + [o]:
                tt += prev_cost
                if q.kind == 'mfma' and p.kind == 'mfma' and q is not o:
                    tt = max(tt, lastm + 16)
                    lastm = tt
                m = re.match(r's_nop (\d+)', q.text)
                prev_cost = 4 * (int(m.group(1)) + 1) if m else 4 * max(1, q.ninstr)
            have = tt // 4 - 1
            if o.kind == 'mfma' and p.kind != 'mfma':
                pass
            need = max(need, r - have)
        if need > 0:
            out.append(Op(f"s_nop {need-1}", 'nop')); nn += 1
        out.append(o)
    return out

def text_of(seq):
    lines = []
    for o in seq:
        if o.kind == 'mark':
            if o.text: lines.append(o.text)
            continue
        for l in o.text.split('\n'): lines.append('    ' + l)
    return lines
```

```python
import sys
from k1 import gen_k1
from k2 import gen_k2
NAME = "concat_heads__mha_block_cached__gqa_block_cached__near_ridge"
def desc(name, vgpr, acc):
    return f""".amdhsa_kernel {name}
  .amdhsa_next_free_vgpr {vgpr}
  .amdhsa_next_free_sgpr 102
  .amdhsa_accum_offset {acc}
  .amdhsa_group_segment_fixed_size 0
  .amdhsa_kernarg_size 104
  .amdhsa_user_sgpr_count 2
  .amdhsa_user_sgpr_kernarg_segment_ptr 1
  .amdhsa_system_sgpr_workgroup_id_x 1
.end_amdhsa_kernel
"""
def kern(name, body):
    return f".globl {name}\n.p2align 8\n.type {name},@function\n{name}:\n" + "\n".join(body) + "\n"
out = sys.argv[1] if len(sys.argv) > 1 else "v1.s"
s = f"""; generated by gen/gen.py (hand-designed schedule, own generator)
; @launch kernel=attn_kernel grid=(512,1,1) block=(256,1,1) lds=163840
; @launch kernel=oproj_kernel grid=(240,1,1) block=(256,1,1) lds=147456
.amdgcn_target "amdgcn-amd-amdhsa--gfx950"
.text
"""
s += kern("attn_kernel", gen_k1()) + kern("oproj_kernel", gen_k2())
s += '.section .rodata,"a"\n.p2align 6\n' + desc("attn_kernel", 512, 256) + ".p2align 6\n" + desc("oproj_kernel", 384, 256)
open(out, "w").write(s)
print("wrote", out, len(s), "bytes")
```
